```python
import torch

def _softmax(x, axis=-1):
    return torch.softmax(x, dim=axis)
def _gelu(x):
    return torch.nn.functional.gelu(x, approximate="tanh")
def _silu(x):
    return torch.nn.functional.silu(x)
def _sigmoid(x):
    return torch.sigmoid(x)
def _layernorm(x, axis=-1, eps=1e-5):
    m = x.mean(dim=axis, keepdim=True)
    v = x.var(dim=axis, keepdim=True, unbiased=False)
    return (x - m) / torch.sqrt(v + eps)
def _scatter_add(tgt, idx, src, axis=0):
    return tgt.clone().index_add_(axis, idx, src)
def _segment_sum(src, seg, n):
    out = torch.zeros((n,) + src.shape[1:], dtype=src.dtype)
    return out.index_add_(0, seg, src)
def _pad(x, pw):
    flat = tuple(v for pair in reversed(pw) for v in pair)
    return torch.nn.functional.pad(x, flat)

kernel_name = 'standalone__mha_softmax__near_ridge'

def setup_inputs():

    _w = (lambda a: (lambda t: t.to(torch.bfloat16) if t.is_floating_point() else t)(torch.as_tensor(a)))
    B, H, Sq, Sk, D = 32, 16, 384, 384, 256
    return {
        "q": _w((lambda *s: torch.randn(*s, dtype=torch.bfloat16) * 0.8)(B, H, Sq, D)),
        "k": _w((lambda *s: torch.randn(*s, dtype=torch.bfloat16) * 0.8)(B, H, Sk, D)),
        "v": _w((lambda *s: torch.randn(*s, dtype=torch.bfloat16) * 0.05)(B, H, Sk, D)),
    }

def reference(q, k, v):
    scale = q.shape[-1] ** -0.5
    scores = torch.einsum("bhqd,bhkd->bhqk", q, k) * scale
    p = _softmax(scores, axis=-1)
    return torch.einsum("bhqk,bhkd->bhqd", p, v)
```

```python
import sys
import re

NAME = "standalone__mha_softmax__near_ridge"

CFG = dict(
    q_nt=True,
    o_pol="nt",
    kv_pol="",
    bar_delay1=2,
    bar_delay2=2,
    q_steps=(4, 5, 6, 8),
    setprio=0,
)

TENSOR_BYTES = 32 * 16 * 384 * 256 * 2
HEAD_BYTES = 384 * 256 * 2
TILE = 16384
NSLOT = 5

QF = 0
SACC = (64, 80)
KF = [96 + 4 * i for i in range(8)]
OACC = 0
PB = 128
QRAW = 128
VF = [224 + 4 * i for i in range(4)]
V_L = 240
V_M = 241
V_DMAK = 242
V_DMAV = 243
V_RDK = 244
V_RDV = 245
V_QO = 246
V_RA = (247, 248)
V_T = [249, 250, 251, 252, 253, 254, 255]

S_Q = 8
S_K = 12
S_V = 16
S_O = 20
S_KV_CUR = 24
S_KV_NXT = 25
S_Q_NXT = 26
S_O_CUR = 27
S_KV2 = 28
S_Q2 = 29
S_ITEM = 30
S_W4K = 31
S_C = 32
S_MASK = 33
S_T0 = 34
S_T1 = 35
S_T2 = 36
S_T3 = 37
S_SCR = 38


def vr(a, n=1):
    return f"v{a}" if n == 1 else f"v[{a}:{a + n - 1}]"


def sr(a, n=1):
    return f"s{a}" if n == 1 else f"s[{a}:{a + n - 1}]"


class Ins:
    __slots__ = ("text", "kind", "rd", "wr", "srcc", "ab", "tag")

    def __init__(self, text, kind, rd=(), wr=(), srcc=(), ab=(), tag=None):
        self.text = text
        self.kind = kind
        self.rd = set(rd)
        self.wr = set(wr)
        self.srcc = set(srcc)
        self.ab = set(ab)
        self.tag = tag


def rng(a, n):
    return list(range(a, a + n))


class Emitter:
    def __init__(self):
        self.ins = []
        self.lq = []
        self.vq = []
        self.vm_sites = []
        self.vm_plan = None
        self.site = 0
        self.lab = 0

    def raw(self, text, kind="salu", **kw):
        self.ins.append(Ins(text, kind, **kw))

    def label(self, name):
        self.ins.append(Ins(name + ":", "label"))

    def comment(self, t):
        self.ins.append(Ins("; " + t, "comment"))

    def _need_lgkm(self, regs):
        n = None
        for i, d in enumerate(self.lq):
            if d & regs:
                n = len(self.lq) - 1 - i
        if n is not None:
            self.wait_lgkm(n)

    def wait_lgkm(self, n):
        if len(self.lq) > n:
            assert n <= 15
            self.raw(f"s_waitcnt lgkmcnt({n})", "wait")
            self.lq = self.lq[len(self.lq) - n:] if n else []

    def _vm_wait_n(self, n):
        idx = self.site
        self.site += 1
        self.vm_sites.append(n)
        if self.vm_plan is None:
            plan = (n, n)
        else:
            plan = self.vm_plan[idx]
        nf, ns = plan
        assert nf <= 63 and ns <= 63
        if nf == ns:
            self.raw(f"s_waitcnt vmcnt({ns})", "wait")
        else:
            assert nf < ns
            self.lab += 1
            L = f"L_w{self.lab}"
            self.raw(f"s_cmp_lg_u32 {sr(S_ITEM)}, 0")
            self.raw(f"s_cbranch_scc1 {L}")
            self.raw(f"s_waitcnt vmcnt({nf})", "wait")
            self.label(L)
            self.raw(f"s_waitcnt vmcnt({ns})", "wait")
        if len(self.vq) > n:
            self.vq = self.vq[len(self.vq) - n:] if n else []

    def wait_vm_tag(self, tag):
        n = 63
        for i, (t, d) in enumerate(self.vq):
            if t == tag:
                n = len(self.vq) - 1 - i
        self._vm_wait_n(min(n, 63))

    def _need_vm(self, regs):
        n = None
        for i, (t, d) in enumerate(self.vq):
            if d & regs:
                n = len(self.vq) - 1 - i
        assert n is None, "register produced by an outstanding VMEM load used without explicit wait"

    def op(self, text, kind, rd=(), wr=(), **kw):
        regs = set(rd) | set(wr)
        self._need_lgkm(regs)
        self._need_vm(regs)
        self.raw(text, kind, rd=rd, wr=wr, **kw)

    def valu(self, text, rd=(), wr=()):
        self.op(text, "valu", rd, wr)

    def trans(self, text, rd=(), wr=()):
        self.op(text, "trans", rd, wr)

    def mfma(self, d, a, b, first):
        c = "0" if first else vr(d, 16)
        rd = rng(a, 4) + rng(b, 4) + ([] if first else rng(d, 16))
        self.op(f"v_mfma_f32_32x32x16_bf16 {vr(d, 16)}, {vr(a, 4)}, {vr(b, 4)}, {c}", "mfma",
                rd, rng(d, 16), srcc=[] if first else rng(d, 16), ab=rng(a, 4) + rng(b, 4))

    def lds_read(self, mnem, d, n, addr, off):
        while len(self.lq) >= 15:
            self.wait_lgkm(14)
        assert 0 <= off < 65536
        o = f" offset:{off}" if off else ""
        self.op(f"{mnem} {vr(d, n)}, {vr(addr)}{o}", "ldsr", [addr], rng(d, n))
        self.lq.append(set(rng(d, n)))

    def lds_write(self, mnem, addr, s, n, off):
        while len(self.lq) >= 15:
            self.wait_lgkm(14)
        assert 0 <= off < 65536
        o = f" offset:{off}" if off else ""
        self.op(f"{mnem} {vr(addr)}, {vr(s, n)}{o}", "ldsw", [addr] + rng(s, n), [])
        self.lq.append(set())

    def dma(self, vaddr, srd, soff, off, tag, pol=""):
        o = f" offset:{off}" if off else ""
        p = f" {pol}" if pol else ""
        self.op(f"buffer_load_dwordx4 {vr(vaddr)}, {sr(srd, 4)}, {sr(soff)} offen{o}{p} lds", "dma", [vaddr], [])
        self.vq.append((tag, set()))

    def gload(self, d, vaddr, srd, soff, off, tag, pol=""):
        o = f" offset:{off}" if off else ""
        p = f" {pol}" if pol else ""
        self.op(f"buffer_load_dwordx4 {vr(d, 4)}, {vr(vaddr)}, {sr(srd, 4)}, {sr(soff)} offen{o}{p}", "vload",
                [vaddr], rng(d, 4))
        self.vq.append((tag, set(rng(d, 4))))

    def gstore(self, s, vaddr, srd, soff, off, tag, pol=""):
        o = f" offset:{off}" if off else ""
        p = f" {pol}" if pol else ""
        self.op(f"buffer_store_dwordx4 {vr(s, 4)}, {vr(vaddr)}, {sr(srd, 4)}, {sr(soff)} offen{o}{p}", "vstore",
                [vaddr] + rng(s, 4), [])
        self.vq.append((tag, set()))

    def nop(self, n):
        while n > 0:
            k = min(n, 16)
            self.raw(f"s_nop {k - 1}", "nop", tag=k)
            n -= k


def states(i):
    if i.kind in ("label", "comment"):
        return 0
    if i.kind == "nop":
        return i.tag
    return 1


def check_hazards(ins):
    errs = []
    n = len(ins)
    for i, a in enumerate(ins):
        if a.kind in ("label", "comment", "nop", "wait", "salu"):
            if a.kind == "salu" and a.text.startswith(("s_mov_b32 m0", "s_add_u32 m0")):
                d = 0
                for j in range(i + 1, min(n, i + 4)):
                    b = ins[j]
                    if b.kind == "dma" and d < 1:
                        errs.append((i, j, "m0->dma"))
                    d += states(b)
                    if d >= 1:
                        break
            continue
        d = 0
        for j in range(i + 1, n):
            b = ins[j]
            if d >= 20:
                break
            need = 0
            if a.kind == "mfma":
                if b.kind == "mfma":
                    if a.wr & b.ab:
                        need = 12
                    elif (a.wr & b.srcc) and a.wr != b.srcc:
                        need = 10
                    elif (a.wr & b.wr) and not (a.wr == b.srcc):
                        need = 12
                elif b.kind in ("valu", "trans", "ldsr", "ldsw", "vload", "vstore", "dma", "perm"):
                    if a.wr & (b.rd | b.wr):
                        need = 12
                    elif a.srcc & b.wr:
                        need = 7
            elif a.kind in ("valu", "trans", "perm"):
                if b.kind == "mfma" and (a.wr & b.rd):
                    need = 2
                if b.kind == "perm" and (a.wr & (b.rd | b.wr)):
                    need = 2
                if a.kind == "trans" and b.kind in ("valu", "perm", "mfma") and (a.wr & b.rd):
                    need = max(need, 1)
                if b.kind == "rfl" and (a.wr & b.rd):
                    need = 1
            elif a.kind in ("vstore",):
                if (a.rd & b.wr):
                    need = 2
            elif a.kind == "ldsw":
                if (a.rd & b.wr) and b.kind in ("valu", "trans", "perm"):
                    need = 2
            if need > d:
                errs.append((i, j, f"need {need} have {d}: [{a.text}] -> [{b.text}]"))
            d += states(b)
    return errs


def emit_dma_tile(e, pos, cfg):
    nxt = pos >= 25
    p = pos - 25 if nxt else pos
    assert p != 24
    slot = p % NSLOT
    base = S_KV_NXT if nxt else S_KV_CUR
    tag = ("D", pos)
    isk = p < 12
    t = p if isk else p - 12
    e.raw(f"s_add_u32 m0, {sr(S_W4K)}, {slot * TILE}")
    e.raw(f"s_add_u32 {sr(S_T0)}, {sr(base)}, {t * TILE}")
    pol = cfg["kv_pol"]
    if isk:
        e.dma(V_DMAK, S_K, S_T0, 0, tag, pol)
        for i in (1, 2, 3):
            tmp = V_T[(i - 1)]
            e.valu(f"v_xor_b32 {vr(tmp)}, {i << 5}, {vr(V_DMAK)}", [V_DMAK], [tmp])
            e.dma(tmp, S_K, S_T0, i * 1024, tag, pol)
    else:
        tmp = V_T[0]
        e.valu(f"v_xor_b32 {vr(tmp)}, 0x80, {vr(V_DMAV)}", [V_DMAV], [tmp])
        e.dma(V_DMAV, S_V, S_T0, 0, tag, pol)
        e.dma(tmp, S_V, S_T0, 1024, tag, pol)
        e.dma(V_DMAV, S_V, S_T0, 2048, tag, pol)
        e.dma(tmp, S_V, S_T0, 3072, tag, pol)


def emit_q_raw(e, cb, cfg, soff_base):
    pol = "nt" if cfg["q_nt"] else ""
    for rb in range(4):
        if rb == 0:
            s = soff_base
        else:
            s = S_T1
            e.raw(f"s_add_u32 {sr(S_T1)}, {sr(soff_base)}, {rb * 4096}")
        e.gload(QRAW + 16 * cb + 4 * rb, V_QO, S_Q, s, cb * 128, ("Q",), pol)


def emit_scr_addrs(e, a_lin, a_frag, a_ow):
    t0, t1 = V_T[5], V_T[6]
    e.valu(f"v_mbcnt_lo_u32_b32 {vr(t0)}, -1, 0", [], [t0])
    e.valu(f"v_mbcnt_hi_u32_b32 {vr(t0)}, -1, {vr(t0)}", [t0], [t0])
    e.valu(f"v_lshrrev_b32 {vr(t1)}, 4, {vr(t0)}", [t0], [t1])
    e.valu(f"v_xor_b32 {vr(t1)}, {vr(t1)}, {vr(t0)}", [t0, t1], [t1])
    e.valu(f"v_and_b32 {vr(t1)}, 7, {vr(t1)}", [t1], [t1])
    e.valu(f"v_lshlrev_b32 {vr(t1)}, 4, {vr(t1)}", [t1], [t1])
    e.valu(f"v_lshrrev_b32 {vr(a_lin)}, 3, {vr(t0)}", [t0], [a_lin])
    e.valu(f"v_lshl_add_u32 {vr(a_lin)}, {vr(a_lin)}, 7, {vr(t1)}", [a_lin, t1], [a_lin])
    e.valu(f"v_add_u32 {vr(a_lin)}, {sr(S_SCR)}, {vr(a_lin)}", [a_lin], [a_lin])
    e.valu(f"v_and_b32 {vr(t1)}, 31, {vr(t0)}", [t0], [t1])
    e.valu(f"v_bfe_u32 {vr(a_ow)}, {vr(t0)}, 1, 3", [t0], [a_ow])
    e.valu(f"v_lshlrev_b32 {vr(a_ow)}, 4, {vr(a_ow)}", [a_ow], [a_ow])
    e.valu(f"v_lshl_add_u32 {vr(a_ow)}, {vr(t1)}, 7, {vr(a_ow)}", [a_ow, t1], [a_ow])
    e.valu(f"v_add_u32 {vr(a_ow)}, {sr(S_SCR)}, {vr(a_ow)}", [a_ow], [a_ow])
    e.valu(f"v_lshrrev_b32 {vr(t1)}, 5, {vr(t0)}", [t0], [t1])
    e.valu(f"v_lshlrev_b32 {vr(t0)}, 4, {vr(t1)}", [t1], [t0])
    e.valu(f"v_xor_b32 {vr(a_frag)}, {vr(t0)}, {vr(a_ow)}", [t0, a_ow], [a_frag])
    e.valu(f"v_lshl_add_u32 {vr(a_ow)}, {vr(t1)}, 3, {vr(a_ow)}", [a_ow, t1], [a_ow])


def emit_q_rounds(e, a_lin, a_frag):
    a_lin2 = V_T[3]
    e.valu(f"v_xor_b32 {vr(a_lin2)}, 64, {vr(a_lin)}", [a_lin], [a_lin2])
    e.wait_vm_tag(("Q",))
    for cb in range(4):
        for rb in range(4):
            e.lds_write("ds_write_b128", a_lin2 if rb & 1 else a_lin, QRAW + 16 * cb + 4 * rb, 4, rb * 1024)
        for s in range(4):
            if s == 0:
                a = a_frag
            else:
                a = V_RA[s & 1]
                e.valu(f"v_xor_b32 {vr(a)}, {s << 5}, {vr(a_frag)}", [a_frag], [a])
            e.lds_read("ds_read_b128", QF + 4 * (4 * cb + s), 4, a, 0)


def softmax_ops(j):
    ops = []
    T = V_T[3:7]
    for i in range(8):
        w = PB + 8 * j + i
        lo, hi = (T[0], T[1]) if i % 2 == 0 else (T[2], T[3])
        ops.append(("u", lambda e, w=w, lo=lo: e.valu(f"v_lshlrev_b32 {vr(lo)}, 16, {vr(w)}", [w], [lo])))
        ops.append(("u", lambda e, w=w, hi=hi: e.valu(f"v_and_b32 {vr(hi)}, {sr(S_MASK)}, {vr(w)}", [w], [hi])))
        ops.append(("f", lambda e, lo=lo: e.valu(f"v_fma_f32 {vr(lo)}, {vr(lo)}, {sr(S_C)}, {vr(V_M)}", [lo, V_M], [lo])))
        ops.append(("f", lambda e, hi=hi: e.valu(f"v_fma_f32 {vr(hi)}, {vr(hi)}, {sr(S_C)}, {vr(V_M)}", [hi, V_M], [hi])))
        ops.append(("e", lambda e, lo=lo: e.trans(f"v_exp_f32 {vr(lo)}, {vr(lo)}", [lo], [lo])))
        ops.append(("e", lambda e, hi=hi: e.trans(f"v_exp_f32 {vr(hi)}, {vr(hi)}", [hi], [hi])))
        ops.append(("a", lambda e, lo=lo: e.valu(f"v_add_f32 {vr(V_L)}, {vr(V_L)}, {vr(lo)}", [V_L, lo], [V_L])))
        ops.append(("a", lambda e, hi=hi: e.valu(f"v_add_f32 {vr(V_L)}, {vr(V_L)}, {vr(hi)}", [V_L, hi], [V_L])))
        ops.append(("c", lambda e, w=w, lo=lo, hi=hi: e.valu(f"v_cvt_pk_bf16_f32 {vr(w)}, {vr(lo)}, {vr(hi)}", [lo, hi], [w])))
    out = [ops[0], ops[1]]
    for i in range(8):
        a = ops[9 * i: 9 * i + 9]
        out += a[2:6]
        if i < 7:
            out += ops[9 * (i + 1): 9 * (i + 1) + 2]
        out += a[6:9]
    return out


def pack_ops(j):
    acc = SACC[j % 2]
    ops = []
    for i in range(8):
        a, b = acc + 2 * i, acc + 2 * i + 1
        w = PB + 8 * j + i
        if j == 0 and i == 0:
            ops.append(("m", lambda e, a=a, b=b: e.valu(f"v_max_f32 {vr(V_M)}, {vr(a)}, {vr(b)}", [a, b], [V_M])))
        else:
            ops.append(("m", lambda e, a=a, b=b: e.valu(f"v_max3_f32 {vr(V_M)}, {vr(a)}, {vr(b)}, {vr(V_M)}", [a, b, V_M], [V_M])))
        ops.append(("c", lambda e, a=a, b=b, w=w: e.valu(f"v_cvt_pk_bf16_f32 {vr(w)}, {vr(a)}, {vr(b)}", [a, b], [w])))
    return ops


def emit_body(e, cfg):
    mf = []
    reads = []
    korder = []
    for s in range(8):
        korder += [s, s + 8]
    for j in range(12):
        for i, s in enumerate(korder):
            mf.append(dict(pos=j, d=SACC[j % 2], b=QF + 4 * s, first=(i == 0), ks=s, kind="k"))
    for j in range(12):
        for a in range(4):
            for dt in (a, a + 4):
                for t in range(2):
                    mf.append(dict(pos=12 + j, d=OACC + 16 * dt, b=PB + 8 * j + 4 * t, first=(j == 0 and t == 0),
                                   dt=dt, t=t, kind="v"))
    N = len(mf)
    kcnt = vcnt = 0
    last_user = {}
    for k, m in enumerate(mf):
        if m["kind"] == "k":
            buf = KF[kcnt % len(KF)]
            kcnt += 1
        else:
            buf = VF[vcnt % len(VF)]
            vcnt += 1
        m["a"] = buf
        m["prev_user"] = last_user.get(buf, -1)
        last_user[buf] = k

    state = dict(next_read=0, landed=0, ra_i=0, cur_addr={})

    def emit_read(k):
        m = mf[k]
        slot = (m["pos"] % NSLOT) * TILE
        if m["kind"] == "k":
            s = m["ks"]
            key = ("k", m["pos"], s & 7)
            if key not in state["cur_addr"]:
                a = V_RA[state["ra_i"] & 1]
                state["ra_i"] += 1
                state["cur_addr"] = {kk: vv for kk, vv in state["cur_addr"].items() if vv != a}
                state["cur_addr"][key] = a
                e.valu(f"v_xor_b32 {vr(a)}, {hex(slot | ((s & 7) << 5))}, {vr(V_RDK)}", [V_RDK], [a])
            a = state["cur_addr"][key]
            e.lds_read("ds_read_b128", m["a"], 4, a, (s >> 3) * 256)
        else:
            dt, t = m["dt"], m["t"]
            key = ("v", m["pos"], dt & 3)
            if key not in state["cur_addr"]:
                a = V_RA[state["ra_i"] & 1]
                state["ra_i"] += 1
                state["cur_addr"] = {kk: vv for kk, vv in state["cur_addr"].items() if vv != a}
                state["cur_addr"][key] = a
                e.valu(f"v_xor_b32 {vr(a)}, {hex(slot | ((dt & 3) << 6))}, {vr(V_RDV)}", [V_RDV], [a])
            a = state["cur_addr"][key]
            off = (dt >> 2) * 256 + t * 8192
            e.lds_read("ds_read_b64_tr_b16", m["a"], 2, a, off)
            e.lds_read("ds_read_b64_tr_b16", m["a"] + 2, 2, a, off + 4096)

    def barrier_release(pos_done):
        e.wait_lgkm(0)
        nxt = pos_done + 1
        if nxt != 24:
            e.wait_vm_tag(("D", nxt))
        e.raw("s_barrier", "salu")
        if pos_done + 5 != 24:
            emit_dma_tile(e, pos_done + 5, cfg)
        state["landed"] = nxt

    e.wait_lgkm(0)
    e.wait_vm_tag(("D", 0))
    e.raw("s_barrier", "salu")
    emit_dma_tile(e, 4, cfg)
    state["landed"] = 0

    valu_q = []
    last_read_at = {}
    reads_left = {p: 16 for p in range(24)}
    released = -1

    def try_reads(k_issued, maxn):
        n = 0
        while n < maxn and state["next_read"] < N:
            r = state["next_read"]
            m = mf[r]
            if m["pos"] > state["landed"] or m["prev_user"] > k_issued:
                break
            emit_read(r)
            reads_left[m["pos"]] -= 1
            if reads_left[m["pos"]] == 0:
                last_read_at[m["pos"]] = k_issued
            state["next_read"] += 1
            n += 1

    def run_valu(n):
        c = 0
        while valu_q and c < n:
            kind, f = valu_q.pop(0)
            if kind == "n":
                if valu_q and c + 1 < n:
                    e.nop(1)
                else:
                    return
                continue
            f(e)
            c += 2 if kind == "e" else 1

    try_reads(-1, 8)
    for k in range(N):
        m = mf[k]
        j = m["pos"]
        idx = k % 16
        if k == 192:
            run_valu(1000)
            e.nop(12)
            valu_q.extend(pack_ops(11))
            run_valu(1000)
            t0 = V_T[0]
            e.valu(f"v_mov_b32 {vr(t0)}, {vr(V_M)}", [V_M], [t0])
            e.nop(2)
            e.op(f"v_permlane32_swap_b32 {vr(t0)}, {vr(V_M)}", "perm", [t0, V_M], [t0, V_M])
            e.nop(1)
            e.valu(f"v_max_f32 {vr(V_M)}, {vr(V_M)}, {vr(t0)}", [V_M, t0], [V_M])
            e.valu(f"v_mul_f32 {vr(V_M)}, {sr(S_C)}, {vr(V_M)}", [V_M], [V_M])
            e.valu(f"v_sub_f32 {vr(V_M)}, 0, {vr(V_M)}", [V_M], [V_M])
            e.valu(f"v_mov_b32 {vr(V_L)}, 0", [], [V_L])
            valu_q.extend(softmax_ops(0))
            run_valu(1000)
            e.nop(2)
            e.raw(f"s_cmp_eq_u32 {sr(S_ITEM)}, 2")
            e.raw(f"s_cselect_b32 {sr(S_K + 2)}, 0, {sr(S_K + 2)}")
            e.raw(f"s_cselect_b32 {sr(S_Q + 2)}, 0, {sr(S_Q + 2)}")
        if idx == 0:
            run_valu(1000)
            if j >= 12:
                if j - 12 + 1 < 12:
                    valu_q.extend(softmax_ops(j - 12 + 1))
        while state["next_read"] <= k:
            r = state["next_read"]
            if mf[r]["pos"] > state["landed"]:
                barrier_release(mf[r]["pos"] - 1)
                released = mf[r]["pos"] - 1
            try_reads(k - 1, 1)
        e.mfma(m["d"], m["a"], m["b"], m["first"])
        if j < 12 and j >= 1 and idx == 3:
            valu_q.extend(pack_ops(j - 1))
        delay = cfg["bar_delay1"] if j < 12 else cfg["bar_delay2"]
        p = released + 1
        if p in last_read_at and k >= last_read_at[p] + delay:
            barrier_release(p)
            released = p
        if j >= 12 and idx == 1 and (j - 12) in cfg["q_steps"]:
            emit_q_raw(e, cfg["q_steps"].index(j - 12), cfg, S_Q_NXT)
        try_reads(k, 2 if j < 12 else 2)
        if j < 12:
            run_valu(2)
        else:
            run_valu(6)
    assert released == 23, released
    assert not valu_q

    a_lin, a_frag, a_ow = VF[0], VF[0] + 1, VF[0] + 2
    rl = VF[1]
    t0 = V_T[0]
    e.valu(f"v_mov_b32 {vr(t0)}, {vr(V_L)}", [V_L], [t0])
    emit_scr_addrs(e, a_lin, a_frag, a_ow)
    e.op(f"v_permlane32_swap_b32 {vr(t0)}, {vr(V_L)}", "perm", [t0, V_L], [t0, V_L])
    e.nop(1)
    e.valu(f"v_add_f32 {vr(V_L)}, {vr(V_L)}, {vr(t0)}", [V_L, t0], [V_L])
    e.trans(f"v_rcp_f32 {vr(rl)}, {vr(V_L)}", [V_L], [rl])
    a_lin2 = VF[0] + 3
    e.valu(f"v_xor_b32 {vr(a_lin2)}, 64, {vr(a_lin)}", [a_lin], [a_lin2])
    opol = cfg["o_pol"]
    for r in range(4):
        for dd in range(2):
            dt = 2 * r + dd
            for mm in range(4):
                o = OACC + 16 * dt + 4 * mm
                e.valu(f"v_pk_mul_f32 {vr(o, 2)}, {vr(o, 2)}, {vr(rl, 2)} op_sel_hi:[1,0]", [o, o + 1, rl], [o, o + 1])
                e.valu(f"v_pk_mul_f32 {vr(o + 2, 2)}, {vr(o + 2, 2)}, {vr(rl, 2)} op_sel_hi:[1,0]", [o + 2, o + 3, rl], [o + 2, o + 3])
                e.valu(f"v_cvt_pk_bf16_f32 {vr(o)}, {vr(o)}, {vr(o + 1)}", [o, o + 1], [o])
                e.valu(f"v_cvt_pk_bf16_f32 {vr(o + 1)}, {vr(o + 2)}, {vr(o + 3)}", [o + 2, o + 3], [o + 1])
                c = dd * 4 + mm
                if c == 0:
                    a = a_ow
                else:
                    a = V_RA[c & 1]
                    e.valu(f"v_xor_b32 {vr(a)}, {c << 4}, {vr(a_ow)}", [a_ow], [a])
                e.lds_write("ds_write_b64", a, o, 2, 0)
        stg = OACC + 32 * r + 16
        e.nop(1)
        for rb in range(4):
            e.lds_read("ds_read_b128", stg + 4 * rb, 4, a_lin2 if rb & 1 else a_lin, rb * 1024)
        if r > 0:
            emit_o_stores(e, r - 1, opol)
    emit_o_stores(e, 3, opol)
    e.raw(f"s_cmp_eq_u32 {sr(S_ITEM)}, 2")
    e.raw("s_cbranch_scc1 L_end")
    emit_q_rounds(e, a_lin, a_frag)
    e.raw(f"s_mov_b32 {sr(S_KV_CUR)}, {sr(S_KV_NXT)}")
    e.raw(f"s_mov_b32 {sr(S_O_CUR)}, {sr(S_Q_NXT)}")
    e.raw(f"s_mov_b32 {sr(S_KV_NXT)}, {sr(S_KV2)}")
    e.raw(f"s_mov_b32 {sr(S_Q_NXT)}, {sr(S_Q2)}")
    e.raw(f"s_add_u32 {sr(S_ITEM)}, {sr(S_ITEM)}, 1")
    e.vq = [((("D", t[1] - 25) if (t[0] == "D" and t[1] >= 25) else ("old",)), d) for (t, d) in e.vq]


def emit_o_stores(e, r, opol):
    stg = OACC + 32 * r + 16
    for rb in range(4):
        if rb == 0:
            s = S_O_CUR
        else:
            s = S_T1
            e.raw(f"s_add_u32 {sr(S_T1)}, {sr(S_O_CUR)}, {rb * 4096}")
        e.gstore(stg + 4 * rb, V_QO, S_O, s, r * 128, ("O",), opol)


def emit_prologue(e, cfg):
    e.raw("s_cmp_ge_u32 s2, 512")
    e.raw("s_cbranch_scc1 L_end")
    e.raw("s_load_dwordx4 s[40:43], s[0:1], 0")
    e.raw("s_load_dwordx4 s[44:47], s[0:1], 16")
    L, W, H, N, T = 0, 1, 2, 3, 4
    e.valu("v_lshrrev_b32 v1, 6, v0", [0], [1])
    e.valu("v_and_b32 v0, 63, v0", [0], [0])
    e.op(f"v_readfirstlane_b32 {sr(S_T0)}, v1", "rfl", [1], [])
    e.valu("v_lshrrev_b32 v2, 5, v0", [0], [2])
    e.valu("v_and_b32 v3, 31, v0", [0], [3])
    e.raw(f"s_lshl_b32 {sr(S_W4K)}, {sr(S_T0)}, 12")
    e.raw(f"s_add_u32 {sr(S_SCR)}, {sr(S_W4K)}, {4 * TILE}")
    e.raw(f"s_and_b32 {sr(S_T1)}, {sr(S_T0)}, 1")
    e.raw(f"s_lshl_b32 {sr(S_T1)}, {sr(S_T1)}, 3")
    e.valu(f"v_or_b32 v4, {sr(S_T1)}, v2", [2], [4])
    e.valu("v_xor_b32 v4, v4, v3", [3, 4], [4])
    e.valu("v_lshlrev_b32 v4, 4, v4", [4], [4])
    e.valu("v_lshl_add_u32 v4, v2, 9, v4", [2, 4], [4])
    e.valu(f"v_add_u32 {vr(V_DMAK)}, {sr(S_W4K)}, v4", [4], [V_DMAK])
    e.valu("v_lshlrev_b32 v4, 2, v2", [2], [4])
    e.valu("v_xor_b32 v4, v4, v3", [3, 4], [4])
    e.valu("v_lshlrev_b32 v4, 4, v4", [4], [4])
    e.valu("v_lshl_add_u32 v4, v2, 9, v4", [2, 4], [4])
    e.valu(f"v_add_u32 {vr(V_DMAV)}, {sr(S_W4K)}, v4", [4], [V_DMAV])
    e.valu("v_and_b32 v4, 15, v3", [3], [4])
    e.valu("v_xor_b32 v4, v4, v2", [2, 4], [4])
    e.valu("v_lshlrev_b32 v4, 4, v4", [4], [4])
    e.valu(f"v_lshl_add_u32 {vr(V_RDK)}, v3, 9, v4", [3, 4], [V_RDK])
    e.valu("v_bfe_u32 v4, v0, 2, 2", [0], [4])
    e.valu("v_lshl_add_u32 v5, v2, 2, v4", [2, 4], [5])
    e.valu("v_lshlrev_b32 v5, 9, v5", [5], [5])
    e.valu("v_lshl_add_u32 v5, v4, 6, v5", [4, 5], [5])
    e.valu("v_bfe_u32 v4, v0, 4, 1", [0], [4])
    e.valu("v_lshl_add_u32 v5, v4, 5, v5", [4, 5], [5])
    e.valu("v_and_b32 v4, 3, v0", [0], [4])
    e.valu(f"v_lshl_add_u32 {vr(V_RDV)}, v4, 3, v5", [4, 5], [V_RDV])
    e.valu("v_lshrrev_b32 v4, 3, v0", [0], [4])
    e.valu("v_lshlrev_b32 v4, 9, v4", [4], [4])
    e.valu("v_and_b32 v5, 7, v0", [0], [5])
    e.valu("v_lshl_add_u32 v4, v5, 4, v4", [4, 5], [4])
    e.raw(f"s_lshl_b32 {sr(S_T1)}, {sr(S_T0)}, 14")
    e.valu(f"v_add_u32 {vr(V_QO)}, {sr(S_T1)}, v4", [4], [V_QO])
    e.raw(f"s_and_b32 {sr(S_T0)}, s2, 7")
    e.raw(f"s_lshr_b32 {sr(S_T1)}, s2, 3")
    e.raw(f"s_mul_i32 {sr(S_T2)}, {sr(S_T1)}, 43")
    e.raw(f"s_lshr_b32 {sr(S_T2)}, {sr(S_T2)}, 7")
    e.raw(f"s_mul_i32 {sr(S_T3)}, {sr(S_T2)}, 3")
    e.raw(f"s_sub_u32 {sr(S_T3)}, {sr(S_T1)}, {sr(S_T3)}")
    e.raw(f"s_lshl_b32 {sr(S_T0)}, {sr(S_T0)}, 6")
    e.raw(f"s_cmp_eq_u32 {sr(S_T1)}, 63")
    e.raw(f"s_cselect_b32 {sr(S_T2)}, 63, {sr(S_T2)}")
    e.raw(f"s_cselect_b32 s48, 0, {21 * HEAD_BYTES}")
    e.raw(f"s_cselect_b32 s49, 65536, s48")
    e.raw(f"s_add_u32 {sr(S_T0)}, {sr(S_T0)}, {sr(S_T2)}")
    e.raw(f"s_mul_i32 {sr(S_KV_CUR)}, {sr(S_T0)}, {HEAD_BYTES}")
    e.raw(f"s_lshl_b32 {sr(S_T3)}, {sr(S_T3)}, 16")
    e.raw(f"s_add_u32 {sr(S_O_CUR)}, {sr(S_KV_CUR)}, {sr(S_T3)}")
    e.raw(f"s_add_u32 {sr(S_KV_NXT)}, {sr(S_KV_CUR)}, s48")
    e.raw(f"s_add_u32 {sr(S_KV2)}, {sr(S_KV_NXT)}, s48")
    e.raw(f"s_add_u32 {sr(S_Q_NXT)}, {sr(S_O_CUR)}, s49")
    e.raw(f"s_add_u32 {sr(S_Q2)}, {sr(S_Q_NXT)}, s49")
    e.raw(f"s_mov_b32 {sr(S_ITEM)}, 0")
    import struct
    import math
    c = struct.unpack("<I", struct.pack("<f", 0.0625 * math.log2(math.e)))[0]
    e.raw(f"s_mov_b32 {sr(S_C)}, {hex(c)}")
    e.raw(f"s_mov_b32 {sr(S_MASK)}, 0xffff0000")
    e.raw("s_waitcnt lgkmcnt(0)", "wait")
    for srd, src in ((S_Q, 40), (S_K, 42), (S_V, 44), (S_O, 46)):
        e.raw(f"s_mov_b32 {sr(srd)}, s{src}")
        e.raw(f"s_and_b32 {sr(srd + 1)}, s{src + 1}, 0xffff")
        e.raw(f"s_mov_b32 {sr(srd + 2)}, {TENSOR_BYTES}")
        e.raw(f"s_mov_b32 {sr(srd + 3)}, 0x00020000")
    if cfg["setprio"]:
        e.raw(f"s_setprio {cfg['setprio']}")
    for cb in range(4):
        emit_q_raw(e, cb, cfg, S_O_CUR)
    for p in range(4):
        emit_dma_tile(e, p, cfg)
    a_lin, a_frag, a_ow = VF[0], VF[0] + 1, VF[0] + 2
    emit_scr_addrs(e, a_lin, a_frag, a_ow)
    emit_q_rounds(e, a_lin, a_frag)


def build(cfg):
    e1 = Emitter()
    emit_prologue(e1, cfg)
    npro = e1.site
    emit_body(e1, cfg)
    nb = e1.site - npro
    first = e1.vm_sites[npro:]
    emit_body(e1, cfg)
    steady = e1.vm_sites[npro + nb:]
    emit_body(e1, cfg)
    steady2 = e1.vm_sites[npro + 2 * nb:]
    assert steady == steady2
    plan = [(n, n) for n in e1.vm_sites[:npro]]
    for f, s in zip(first, steady):
        if f >= s:
            plan.append((s, s))
        else:
            plan.append((f, s))
    e = Emitter()
    e.vm_plan = plan
    emit_prologue(e, cfg)
    e.wait_lgkm(0)
    e.label("L_loop")
    emit_body(e, cfg)
    e.wait_lgkm(0)
    e.raw("s_branch L_loop")
    e.label("L_end")
    e.raw("s_endpgm")
    errs = check_hazards(e.ins)
    for x in errs:
        print("HAZARD", x, file=sys.stderr)
    assert not errs
    return e


HEADER = f"""; Kernarg layout for this problem (48 bytes, ptrs only, base s[0:1]):
; @launch grid=(512,1,1) block=(256,1,1) lds=81920
.amdgcn_target "amdgcn-amd-amdhsa--gfx950"
.text
.globl {NAME}_kernel
.p2align 8
.type {NAME}_kernel,@function
{NAME}_kernel:
"""

FOOTER = f""".section .rodata,"a"
.p2align 6
.amdhsa_kernel {NAME}_kernel
  .amdhsa_next_free_vgpr 256
  .amdhsa_next_free_sgpr 56
  .amdhsa_accum_offset 256
  .amdhsa_group_segment_fixed_size 0
  .amdhsa_kernarg_size 48
  .amdhsa_user_sgpr_count 2
  .amdhsa_user_sgpr_kernarg_segment_ptr 1
  .amdhsa_system_sgpr_workgroup_id_x 1
.end_amdhsa_kernel
"""


def render(e):
    out = [HEADER]
    for i in e.ins:
        if i.kind == "label":
            out.append(i.text + "\n")
        else:
            out.append("    " + i.text + "\n")
    out.append(FOOTER)
    return "".join(out)


if __name__ == "__main__":
    cfg = dict(CFG)
    outp = f"cdna_kernels/{NAME}.s"
    for a in sys.argv[1:]:
        if a.startswith("out="):
            outp = a[4:]
        else:
            k, v = a.split("=", 1)
            cfg[k] = eval(v)
    e = build(cfg)
    open(outp, "w").write(render(e))
    from collections import Counter
    print(Counter(i.kind for i in e.ins), file=sys.stderr)
```
